```python
import torch

def _softmax(x, axis=-1):
    return torch.softmax(x, dim=axis)
def _gelu(x):
    return torch.nn.functional.gelu(x, approximate="tanh")
def _silu(x):
    return torch.nn.functional.silu(x)
def _sigmoid(x):
    return torch.sigmoid(x)
def _layernorm(x, axis=-1, eps=1e-5):
    m = x.mean(dim=axis, keepdim=True)
    v = x.var(dim=axis, keepdim=True, unbiased=False)
    return (x - m) / torch.sqrt(v + eps)
def _scatter_add(tgt, idx, src, axis=0):
    return tgt.clone().index_add_(axis, idx, src)
def _segment_sum(src, seg, n):
    out = torch.zeros((n,) + src.shape[1:], dtype=src.dtype)
    return out.index_add_(0, seg, src)
def _pad(x, pw):
    flat = tuple(v for pair in reversed(pw) for v in pair)
    return torch.nn.functional.pad(x, flat)

kernel_name = 'concat_heads__gqa_block_cached__gqa_block_cached__near_ridge'

def setup_inputs():

    _w = (lambda a: (lambda t: t.to(torch.bfloat16) if t.is_floating_point() else t)(torch.as_tensor(a)))
    def _A_setup():
        B, Sq, D = 8, 64, 448
        Hq, Hkv, Sk, Dh = 16, 8, 1024, 256
        assert Hq % Hkv == 0, (Hq, Hkv)
        return {
            "x": _w((lambda *s: torch.randn(*s, dtype=torch.bfloat16) * 0.8)(B, Sq, D)),
            "k_cache": _w((lambda *s: torch.randn(*s, dtype=torch.bfloat16) * 0.8)(B, Hkv, Sk, Dh)),
            "v_cache": _w((lambda *s: torch.randn(*s, dtype=torch.bfloat16) * 0.05)(B, Hkv, Sk, Dh)),
            "wq": _w((lambda *s: torch.randn(*s, dtype=torch.bfloat16) * 0.8)(D, Hq * Dh) * (D ** -0.5)),
            "wo": _w((lambda *s: torch.randn(*s, dtype=torch.bfloat16) * 0.05)(Hq * Dh, D) * ((Hq * Dh) ** -0.5)),
        }
    _A_in = _A_setup()

    def _B_setup():
        B, Sq, D = 8, 64, 448
        Hq, Hkv, Sk, Dh = 16, 8, 1024, 256
        assert Hq % Hkv == 0, (Hq, Hkv)
        return {
            "x": _w((lambda *s: torch.randn(*s, dtype=torch.bfloat16) * 0.8)(B, Sq, D)),
            "k_cache": _w((lambda *s: torch.randn(*s, dtype=torch.bfloat16) * 0.8)(B, Hkv, Sk, Dh)),
            "v_cache": _w((lambda *s: torch.randn(*s, dtype=torch.bfloat16) * 0.05)(B, Hkv, Sk, Dh)),
            "wq": _w((lambda *s: torch.randn(*s, dtype=torch.bfloat16) * 0.8)(D, Hq * Dh) * (D ** -0.5)),
            "wo": _w((lambda *s: torch.randn(*s, dtype=torch.bfloat16) * 0.05)(Hq * Dh, D) * ((Hq * Dh) ** -0.5)),
        }
    _B_in = _B_setup()

    return {
        "A_x": _A_in["x"],
        "A_k_cache": _A_in["k_cache"],
        "A_v_cache": _A_in["v_cache"],
        "A_wq": _A_in["wq"],
        "A_wo": _A_in["wo"],
        "B_x": _B_in["x"],
        "B_k_cache": _B_in["k_cache"],
        "B_v_cache": _B_in["v_cache"],
        "B_wq": _B_in["wq"],
        "B_wo": _B_in["wo"],
    }

def reference(A_x, A_k_cache, A_v_cache, A_wq, A_wo, B_x, B_k_cache, B_v_cache, B_wq, B_wo):
    def _A_ref(x, k_cache, v_cache, wq, wo):
        B, Sq, D = x.shape
        Hq, Dh = 16, 256
        Hkv = k_cache.shape[1]
        rep = Hq // Hkv
        q = (lambda x, *d: x.permute(*d))((x @ wq).reshape(B, Sq, Hq, Dh), 0, 2, 1, 3)
        k = (lambda x, n, axis: torch.repeat_interleave(x, n, dim=axis))(k_cache, rep, axis=1)
        v = (lambda x, n, axis: torch.repeat_interleave(x, n, dim=axis))(v_cache, rep, axis=1)
        scores = torch.einsum("bhqd,bhkd->bhqk", q, k) * (Dh ** -0.5)
        p = _softmax(scores, axis=-1)
        o = torch.einsum("bhqk,bhkd->bhqd", p, v)
        return (lambda x, *d: x.permute(*d))(o, 0, 2, 1, 3).reshape(B, Sq, Hq * Dh) @ wo

    def _B_ref(x, k_cache, v_cache, wq, wo):
        B, Sq, D = x.shape
        Hq, Dh = 16, 256
        Hkv = k_cache.shape[1]
        rep = Hq // Hkv
        q = (lambda x, *d: x.permute(*d))((x @ wq).reshape(B, Sq, Hq, Dh), 0, 2, 1, 3)
        k = (lambda x, n, axis: torch.repeat_interleave(x, n, dim=axis))(k_cache, rep, axis=1)
        v = (lambda x, n, axis: torch.repeat_interleave(x, n, dim=axis))(v_cache, rep, axis=1)
        scores = torch.einsum("bhqd,bhkd->bhqk", q, k) * (Dh ** -0.5)
        p = _softmax(scores, axis=-1)
        o = torch.einsum("bhqk,bhkd->bhqd", p, v)
        return (lambda x, *d: x.permute(*d))(o, 0, 2, 1, 3).reshape(B, Sq, Hq * Dh) @ wo

    a = _A_ref(A_x, A_k_cache, A_v_cache, A_wq, A_wo)
    b = _B_ref(B_x, B_k_cache, B_v_cache, B_wq, B_wo)
    return torch.concatenate([a, b], axis=-1)
```

```python
import re

REG_RE = re.compile(r'^(-?\|?)(abs\()?([vas])(\d+)\)?\|?$')
RNG_RE = re.compile(r'^(-?)([vas])\[(\d+):(\d+)\]$')

def regs_of(op):
    op = op.strip()
    m = RNG_RE.match(op)
    if m:
        return {(m.group(2), i) for i in range(int(m.group(3)), int(m.group(4)) + 1)}
    m = REG_RE.match(op)
    if m:
        return {(m.group(3), int(m.group(4)))}
    if op in ("vcc", "vcc_lo", "vcc_hi"): return {("vcc", 0)}
    if op == "m0": return {("m0", 0)}
    if op in ("exec", "exec_lo", "exec_hi"): return {("exec", 0)}
    return set()

TRANS = ("v_exp_f32", "v_log_f32", "v_rcp_f32", "v_rsq_f32", "v_sqrt_f32", "v_sin_f32", "v_cos_f32", "v_rcp_iflag_f32")

class Ins:
    def __init__(self, text):
        self.text = text
        t = text.split(";")[0].strip()
        self.is_label = t.endswith(":")
        self.is_dir = t.startswith(".") and not self.is_label
        self.mn = "" ; self.ops = []
        self.rd = set(); self.wr = set()
        self.kind = None
        self.ws = 0
        self.mfma_c = set(); self.mfma_ab = set(); self.passes = 0
        self.store_data = set(); self.target = None
        if self.is_label or self.is_dir or not t: return
        parts = t.split(None, 1)
        self.mn = mn = parts[0]
        rest = parts[1] if len(parts) > 1 else ""
        ops = [o.strip() for o in rest.split(",")] if rest else []
        mods = []
        if ops:
            last = ops[-1].split()
            if last:
                ops[-1] = last[0]; mods = last[1:]
        self.ops = ops; self.mods = mods
        self.ws = 1
        R = regs_of
        if mn == "s_nop":
            self.kind = "salu"; self.ws = int(ops[0], 0) + 1
        elif mn.startswith("v_mfma"):
            self.kind = "mfma"; self.wr = R(ops[0]); self.mfma_ab = R(ops[1]) | R(ops[2]); self.mfma_c = R(ops[3])
            self.rd = self.mfma_ab | self.mfma_c
            self.passes = 8 if "32x32x16" in mn else 4 if "16x16x32" in mn else None
            assert self.passes
        elif mn.startswith("v_"):
            self.kind = "valu"
            base = mn.replace("_e32", "").replace("_e64", "").replace("_dpp", "")
            if base.startswith("v_permlane") and "swap" in base:
                self.rd = R(ops[0]) | R(ops[1]); self.wr = set(self.rd); self.kind = "permlane"
            elif base.startswith("v_cmp"):
                self.wr = R(ops[0]); self.rd = set().union(*[R(o) for o in ops[1:]])
                if base.startswith("v_cmpx"): self.wr |= {("exec", 0)}
            elif base in ("v_add_co_u32", "v_sub_co_u32", "v_subrev_co_u32", "v_addc_co_u32", "v_subb_co_u32"):
                self.wr = R(ops[0]) | R(ops[1]); self.rd = set().union(*[R(o) for o in ops[2:]])
            else:
                self.wr = R(ops[0]); self.rd = set().union(*[R(o) for o in ops[1:]]) if len(ops) > 1 else set()
                if base in ("v_fmac_f32", "v_pk_fmac_f16", "v_dot2c_f32_bf16", "v_writelane_b32"): self.rd |= R(ops[0])
                if base == "v_cndmask_b32" and len(ops) == 3: self.rd |= {("vcc", 0)}
            self.trans = base in TRANS
            self.dpp = "_dpp" in mn or any(m.startswith(("row_", "quad_perm", "wave_")) for m in mods)
            self.rdlane = base in ("v_readfirstlane_b32", "v_readlane_b32")
        elif mn.startswith("ds_"):
            self.kind = "ds"
            if mn.startswith("ds_read") or mn.startswith("ds_bpermute") or mn.startswith("ds_permute") or mn.startswith("ds_swizzle") or "_rtn" in mn:
                self.wr = R(ops[0]); self.rd = set().union(*[R(o) for o in ops[1:]])
            else:
                self.rd = set().union(*[R(o) for o in ops])
        elif mn.startswith("buffer_") or mn.startswith("global_"):
            self.kind = "vmem"
            if mn in ("buffer_wbl2", "buffer_inv"):
                pass
            elif "lds" in mods or "_lds_" in mn:
                self.rd = set().union(*[R(o) for o in ops]) | {("m0", 0)}; self.ldsdma = True
            elif "load" in mn:
                self.wr = R(ops[0]); self.rd = set().union(*[R(o) for o in ops[1:]])
            else:
                self.rd = set().union(*[R(o) for o in ops])
                d = ops[0] if mn.startswith("buffer_") else ops[1]
                if "x3" in mn or "x4" in mn: self.store_data = R(d)
                if "atomic" in mn and "sc0" in mods: self.wr = R(d)
        elif mn.startswith("s_"):
            self.kind = "salu"
            if mn.startswith(("s_cbranch", "s_branch")):
                self.target = ops[0]
            elif mn == "s_call_b64":
                self.target = ops[1]; self.wr = R(ops[0])
            elif mn.startswith(("s_cmp", "s_waitcnt", "s_barrier", "s_endpgm", "s_setprio", "s_sleep", "s_setpc", "s_bitcmp")):
                self.rd = set().union(*[R(o) for o in ops]) if ops else set()
            elif mn.startswith(("s_load", "s_memtime", "s_memrealtime", "s_buffer_load")):
                self.kind = "smem"; self.wr = R(ops[0]); self.rd = set().union(*[R(o) for o in ops[1:]]) if len(ops) > 1 else set()
            else:
                self.wr = R(ops[0]); self.rd = set().union(*[R(o) for o in ops[1:]]) if len(ops) > 1 else set()
                if "saveexec" in mn: self.wr |= {("exec", 0)}
        else:
            raise ValueError("unknown instr " + text)

def isv(s): return {r for r in s if r[0] in ("v", "a")}
def iss(s): return {r for r in s if r[0] in ("s", "vcc")}

def need(p, c):
    n = 0
    pk, ck = p.kind, c.kind
    pvalu = pk in ("valu", "permlane"); cvalu = ck in ("valu", "permlane")
    if pvalu:
        w = isv(p.wr)
        if ck == "mfma" and w & c.rd: n = max(n, 2)
        if ck == "permlane" and w & c.rd: n = max(n, 2)
        if ck == "valu" and getattr(c, "dpp", False) and w & c.rd: n = max(n, 2)
        if ck == "valu" and getattr(c, "rdlane", False) and w & c.rd: n = max(n, 1)
        if getattr(p, "trans", False) and cvalu and not getattr(c, "trans", False) and w & c.rd: n = max(n, 1)
        if getattr(p, "trans", False) and ck in ("mfma",) and w & c.rd: n = max(n, 2)
        sw = iss(p.wr)
        if sw:
            if ck == "vmem" and sw & c.rd: n = max(n, 5)
            if cvalu and sw & c.rd: n = max(n, 4 if getattr(c, "rdlane", False) else 2)
            if ck in ("salu", "smem") and sw & c.rd: n = max(n, 1)
        if ("exec", 0) in p.wr:
            if ck == "mfma": n = max(n, 4)
            if ck == "permlane" or getattr(c, "rdlane", False): n = max(n, 4)
            if getattr(c, "dpp", False): n = max(n, 5)
    if pk == "mfma":
        big = {4: 8, 8: 12}[p.passes]
        if ck == "mfma":
            if p.wr & c.mfma_ab: n = max(n, big)
            if p.wr & c.mfma_c:
                if not (p.wr == c.mfma_c and p.passes == c.passes): n = max(n, big - 2)
            elif p.wr & c.wr: n = max(n, big)
        elif cvalu or ck in ("ds", "vmem"):
            if p.wr & (c.rd | c.wr): n = max(n, big)
            if cvalu and p.mfma_c & c.wr: n = max(n, {4: 3, 8: 7}[p.passes])
    if pk == "vmem" and p.store_data:
        if p.store_data & c.wr: n = max(n, 2)
    if pk == "salu" and ("m0", 0) in p.wr and getattr(c, "ldsdma", False): n = max(n, 1)
    return n

class Asm:
    def __init__(self):
        self.L = []
    def __call__(self, text):
        for t in text.split("\n"):
            t = t.strip()
            if t: self.L.append(Ins(t))
    def label(self, name): self(name + ":")
    def raw(self, text):
        i = Ins(".x"); i.text = text; self.L.append(i)
    def finalize(self):
        out = []
        WIN = 24
        for ins in self.L:
            if ins.kind:
                dist = 0; pad = 0
                for p in reversed(out):
                    if not p.kind: continue
                    nd = need(p, ins)
                    if nd > dist: pad = max(pad, nd - dist)
                    dist += p.ws
                    if dist >= WIN: break
                    if p.mn in ("s_branch", "s_setpc_b64", "s_endpgm"): break
                while pad > 0:
                    k = min(pad, 16); out.append(Ins(f"s_nop {k-1}")); pad -= k
            out.append(ins)
        labels = {i.text.split(";")[0].strip()[:-1]: n for n, i in enumerate(out) if i.is_label}
        calls = []
        def check_edge(src, dst, what):
            pre = []; d = 0
            for p in reversed(out[:src + 1]):
                if p.kind:
                    pre.append((p, d)); d += p.ws
                    if d >= WIN: break
            d2 = 0
            for c in out[dst:]:
                if not c.kind: continue
                for p, dp in pre:
                    nd = need(p, c)
                    if nd > dp + d2:
                        raise RuntimeError(f"hazard across {what}: '{p.text}' -> '{c.text}' need {nd} have {dp + d2}")
                d2 += c.ws
                if d2 >= WIN or c.mn in ("s_branch", "s_setpc_b64", "s_endpgm"): break
        for n, i in enumerate(out):
            if i.kind and i.target and i.target in labels:
                check_edge(n, labels[i.target], "branch " + i.target)
                if i.mn == "s_call_b64": calls.append((n, i))
        for n, i in enumerate(out):
            if i.mn == "s_setpc_b64":
                for cn, ci in calls:
                    if ci.wr == i.rd:
                        check_edge(n, cn + 1, "return")
        self.out = out
        return "\n".join(("" if (i.is_label or i.is_dir) else "    ") + i.text for i in out) + "\n"
```

```python
import sys, math
from kgen import Asm
NAME = "concat_heads__gqa_block_cached__gqa_block_cached__near_ridge"
HDR = open("cdna_kernels/" + NAME + ".s.ref").read().split("; Override launch")[0]

def f2u(x):
    import struct
    return struct.unpack("<I", struct.pack("<f", x))[0]

def gen(nt_kv=True, nt_w=False, part_bf16=False, stamps=False, dump=None):
    A = Asm()
    O = 0; QF = 64; S = 96; P = 112; FB = 120; NFB = 16
    vDK = [184, 185]; vDV = [186, 187]; vDW = [188, 189]; vDX = [190, 191]; vDO = 192
    vKA0 = 193; vVA0 = 194; vXA0 = 195; vOA0 = 196
    vA = list(range(200, 208))
    vMC = 208; vTHR = 209; vL = 210; vM = 211; vL2 = 212
    vT = list(range(216, 232))
    vXF = 232
    vLANE16 = 240
    sWQ, sK, sV, sWO, sX, sWS = 8, 12, 16, 20, 24, 28
    sW = 32; sCUR = 33; sPREV = 34; sIT = 35; sGOFF = 36; sT0 = 37; sT1 = 38; sC = 39
    sRET = 40
    sWROW = 42
    sWQOFF = 43; sXOFF = 44; sWOOFF = 45; sPOFF = 46; sT2 = 47; sSTB = 48
    sTS = 50
    srd = lambda b: f"s[{b}:{b+3}]"
    vr = lambda b, n=4: f"v[{b}:{b+n-1}]"
    KVF = " nt" if nt_kv else ""
    WF = " nt" if nt_w else ""
    nblk_red = 28
    A.raw(HDR.rstrip("\n"))
    A.raw(f"; @launch kernel=attn_kernel grid=(256,1,1) block=(256,1,1) lds=163840")
    A.raw(f"; @launch kernel=red_kernel grid=({nblk_red},16,1) block=(256,1,1) lds=0")
    A('.amdgcn_target "amdgcn-amd-amdhsa--gfx950"')
    A(".text"); A(".globl attn_kernel"); A(".p2align 8"); A(".type attn_kernel,@function"); A.label("attn_kernel")
    nst = [0]
    def stamp():
        if stamps:
            A(f"s_memtime s[{sTS + 2*nst[0]}:{sTS + 2*nst[0] + 1}]"); nst[0] += 1
    stamp()
    A("s_cmp_ge_u32 s2, 256"); A("s_cbranch_scc1 L_end")
    A("s_and_b32 s3, s2, 7"); A("s_lshr_b32 s4, s2, 3")
    A("s_lshr_b32 s5, s3, 2")
    A("s_mul_i32 s6, s5, 40")
    A("s_add_u32 s6, s0, s6"); A("s_addc_u32 s7, s1, 0")
    A(f"s_load_dwordx2 s[{sX}:{sX+1}], s[6:7], 0")
    A(f"s_load_dwordx2 s[{sK}:{sK+1}], s[6:7], 8")
    A(f"s_load_dwordx2 s[{sV}:{sV+1}], s[6:7], 16")
    A(f"s_load_dwordx2 s[{sWQ}:{sWQ+1}], s[6:7], 24")
    A(f"s_load_dwordx2 s[{sWO}:{sWO+1}], s[6:7], 32")
    A(f"s_load_dwordx2 s[{sWS}:{sWS+1}], s[0:1], 96")
    A("s_and_b32 s3, s3, 3"); A("s_lshl_b32 s3, s3, 2"); A("s_and_b32 s6, s4, 3"); A("s_add_u32 s3, s3, s6")
    A("s_lshr_b32 s4, s4, 2")
    t = vT
    A(f"v_lshrrev_b32 v{t[0]}, 6, v0")
    A(f"v_and_b32 v{t[1]}, 63, v0")
    A(f"v_readfirstlane_b32 s{sW}, v{t[0]}")
    A(f"v_lshrrev_b32 v{t[2]}, 5, v{t[1]}")
    A(f"v_and_b32 v{t[3]}, 31, v0")
    A(f"v_lshlrev_b32 v{vLANE16}, 4, v{t[1]}")
    A(f"v_lshl_add_u32 v{t[4]}, v{t[0]}, 2, v{t[2]}")
    for ab in range(2):
        A(f"v_add_u32 v{t[5]}, {2*ab}, v{t[4]}")
        A(f"v_and_b32 v{t[6]}, 7, v{t[5]}"); A(f"v_lshlrev_b32 v{t[6]}, 1, v{t[6]}")
        A(f"v_xor_b32 v{t[6]}, v{t[6]}, v{t[3]}"); A(f"v_lshlrev_b32 v{t[6]}, 4, v{t[6]}")
        A(f"v_lshl_add_u32 v{vDV[ab]}, v{t[2]}, 9, v{t[6]}")
        A(f"v_mul_u32_u24 v{t[7]}, 7680, v{t[2]}")
        A(f"v_add_u32 v{vDW[ab]}, v{t[7]}, v{vDV[ab]}")
        if ab: A(f"v_add_u32 v{vDW[ab]}, 15360, v{vDW[ab]}")
        A(f"v_xor_b32 v{t[5]}, v{t[5]}, v{t[3]}"); A(f"v_lshlrev_b32 v{t[5]}, 4, v{t[5]}")
        A(f"v_lshl_add_u32 v{vDK[ab]}, v{t[2]}, 9, v{t[5]}")
    A(f"v_lshrrev_b32 v{t[2]}, 4, v{t[1]}")
    A(f"v_lshrrev_b32 v{t[3]}, 3, v{t[1]}")
    A(f"v_and_b32 v{t[4]}, 7, v{t[1]}")
    A(f"v_mul_u32_u24 v{t[3]}, 896, v{t[3]}")
    for ab in range(2):
        A(f"v_add_u32 v{t[5]}, {4*ab}, v{t[2]}"); A(f"v_xor_b32 v{t[5]}, v{t[5]}, v{t[4]}")
        A(f"v_lshl_add_u32 v{vDX[ab]}, v{t[5]}, 4, v{t[3]}")
        if ab: A(f"v_add_u32 v{vDX[ab]}, {8*896-1024}, v{vDX[ab]}")
    A("s_waitcnt lgkmcnt(0)")
    A(f"s_mul_i32 s6, s4, 57344"); A(f"s_add_u32 s{sX}, s{sX}, s6"); A(f"s_addc_u32 s{sX+1}, s{sX+1}, 0")
    A(f"s_mov_b32 s{sX+2}, 57344"); A(f"s_mov_b32 s{sX+3}, 0x20000")
    A(f"s_lshl_b32 s6, s3, 9"); A(f"s_add_u32 s{sWQ}, s{sWQ}, s6"); A(f"s_addc_u32 s{sWQ+1}, s{sWQ+1}, 0")
    A(f"s_sub_u32 s{sWQ+2}, {448*8192}, s6"); A(f"s_mov_b32 s{sWQ+3}, 0x20000")
    A(f"s_lshl_b32 s{sWROW}, s{sW}, 11")
    A(f"s_lshl_b32 s{sWQOFF}, s{sW}, 15")
    A(f"s_mul_i32 s{sXOFF}, s{sW}, {16*896}")
    def issue_q(n):
        R = 40960 * (n % 4)
        A(f"s_add_u32 m0, s{sWROW}, {R + 32768}")
        A(f"s_add_u32 s{sT0}, s{sXOFF}, {128*n}")
        for ab in range(2): A(f"buffer_load_dwordx4 v{vDX[ab]}, {srd(sX)}, s{sT0} offen offset:{1024*ab}{WF} lds")
        for g in range(4):
            A(f"s_add_u32 m0, s{sWROW}, {R + g*8192}")
            A(f"s_add_u32 s{sT0}, s{sWQOFF}, {(64*n + 16*g)*8192}")
            for ab in range(2): A(f"buffer_load_dwordx4 v{vDW[ab]}, {srd(sWQ)}, s{sT0} offen offset:{1024*ab}{WF} lds")
    for n in range(4): issue_q(n)
    stamp()
    A(f"s_lshr_b32 s6, s3, 1"); A(f"s_lshl_b32 s7, s4, 3"); A("s_add_u32 s6, s6, s7"); A("s_lshl_b32 s6, s6, 19")
    for s in (sK, sV):
        A(f"s_add_u32 s{s}, s{s}, s6"); A(f"s_addc_u32 s{s+1}, s{s+1}, 0"); A(f"s_mov_b32 s{s+2}, 524288"); A(f"s_mov_b32 s{s+3}, 0x20000")
    A(f"s_mul_i32 s6, s3, 229376"); A(f"s_add_u32 s{sWO}, s{sWO}, s6"); A(f"s_addc_u32 s{sWO+1}, s{sWO+1}, 0")
    A(f"s_mov_b32 s{sWO+2}, 229376"); A(f"s_mov_b32 s{sWO+3}, 0x20000")
    PB = 57344 if part_bf16 else 114688
    A(f"s_lshl_b32 s6, s5, 3"); A("s_add_u32 s6, s6, s4"); A("s_lshl_b32 s6, s6, 4"); A("s_add_u32 s6, s6, s3")
    A(f"s_mul_i32 s6, s6, {PB}"); A(f"s_add_u32 s{sWS}, s{sWS}, s6"); A(f"s_addc_u32 s{sWS+1}, s{sWS+1}, 0")
    A(f"s_mov_b32 s{sWS+2}, {PB}"); A(f"s_mov_b32 s{sWS+3}, 0x20000")
    A(f"s_mul_i32 s{sPOFF}, s{sW}, {PB//4}")
    A(f"s_mul_i32 s{sWOOFF}, s{sW}, {64*896}")
    A(f"s_mov_b32 s{sC}, {hex(f2u(math.log2(math.e)/16))}")
    A(f"v_lshlrev_b32 v{t[5]}, 1, v{t[2]}"); A(f"v_xor_b32 v{t[5]}, v{t[5]}, v{t[4]}")
    A(f"v_lshl_add_u32 v{vDO}, v{t[5]}, 4, v{t[3]}")
    A(f"v_and_b32 v{t[3]}, 15, v{t[1]}")
    A(f"v_xor_b32 v{t[5]}, v{t[2]}, v{t[3]}"); A(f"v_lshlrev_b32 v{t[5]}, 4, v{t[5]}")
    A(f"v_lshl_add_u32 v{vKA0}, v{t[3]}, 9, v{t[5]}")
    A(f"v_lshrrev_b32 v{t[4]}, 2, v{t[1]}")
    A(f"v_bfe_u32 v{t[5]}, v{t[1]}, 1, 1")
    A(f"v_and_b32 v{t[6]}, 1, v{t[1]}"); A(f"v_lshlrev_b32 v{t[6]}, 3, v{t[6]}")
    A(f"v_and_b32 v{t[7]}, 7, v{t[4]}"); A(f"v_lshlrev_b32 v{t[7]}, 1, v{t[7]}"); A(f"v_xor_b32 v{t[7]}, v{t[7]}, v{t[5]}")
    A(f"v_lshl_add_u32 v{t[7]}, v{t[7]}, 4, v{t[6]}")
    A(f"v_lshl_add_u32 v{vVA0}, v{t[4]}, 9, v{t[7]}")
    A(f"v_and_b32 v{t[7]}, 6, v{t[4]}"); A(f"v_xor_b32 v{t[7]}, v{t[7]}, v{t[5]}")
    A(f"v_lshl_add_u32 v{t[7]}, v{t[7]}, 4, v{t[6]}")
    A(f"v_lshl_add_u32 v{vOA0}, v{t[4]}, 7, v{t[7]}")
    A(f"v_lshrrev_b32 v{t[5]}, 1, v{t[2]}"); A(f"v_lshrrev_b32 v{t[6]}, 1, v{t[3]}"); A(f"v_xor_b32 v{t[5]}, v{t[5]}, v{t[6]}")
    A(f"v_lshlrev_b32 v{t[5]}, 4, v{t[5]}"); A(f"v_and_b32 v{t[6]}, 1, v{t[2]}"); A(f"v_lshl_add_u32 v{t[5]}, v{t[6]}, 3, v{t[5]}")
    A(f"v_lshl_add_u32 v{t[5]}, v{t[3]}, 7, v{t[5]}")
    A(f"v_add_u32 v{vXA0}, s{sWROW}, v{t[5]}")
    A(f"v_add_u32 v{vXA0}, 32768, v{vXA0}")
    for i in range(64): A(f"v_mov_b32 v{O+i}, 0")

    def issue_kv(s, dv):
        for g in range(4):
            if g == 0:
                A(f"s_add_u32 m0, s{sPREV}, s{sWROW}"); so = sGOFF
                A("s_nop 0")
            else:
                A(f"s_add_u32 m0, m0, 8192"); A(f"s_add_u32 s{sT0}, s{sGOFF}, {g*8192}"); so = sT0
            for ab in range(2): A(f"buffer_load_dwordx4 v{dv[ab]}, {srd(s)}, s{so} offen offset:{1024*ab}{KVF} lds")
    def issue_wo():
        A(f"s_lshl_b32 s{sT1}, s{sW}, 13")
        A(f"s_add_u32 m0, s{sPREV}, s{sT1}"); A(f"s_mov_b32 s{sT0}, s{sWOOFF}")
        for q in range(8):
            if q:
                A("s_add_u32 m0, m0, 1024"); A(f"s_add_u32 s{sT0}, s{sT0}, 7168")
            A(f"buffer_load_dwordx4 v{vDO}, {srd(sWO)}, s{sT0} offen{WF} lds")
        A(f"s_add_u32 s{sWOOFF}, s{sWOOFF}, 128")
    def advance():
        A(f"s_mov_b32 s{sPREV}, s{sCUR}"); A(f"s_add_u32 s{sCUR}, s{sCUR}, 32768")
        A(f"s_cmp_ge_u32 s{sCUR}, 163840"); A(f"s_cselect_b32 s{sCUR}, 0, s{sCUR}")

    class Pipe:
        def __init__(self, items, depth, lpi):
            self.items = items; self.depth = depth; self.lpi = lpi; self.issued = 0
        def load(self, i):
            self.items[i][0](FB + 4 * (i % NFB)); self.issued = i + 1
        def pre(self):
            for i in range(min(self.depth, len(self.items))): self.load(i)
        def run(self, fill=None):
            n = len(self.items)
            for i in range(n):
                A(f"s_waitcnt lgkmcnt({(self.issued - i - 1) * self.lpi})")
                self.items[i][1](FB + 4 * (i % NFB))
                if self.issued < n: self.load(self.issued)
                if fill: fill(i)
    def trload(addr, off0, off1):
        def f(d):
            A(f"ds_read_b64_tr_b16 {vr(d,2)}, v{addr} offset:{off0}")
            A(f"ds_read_b64_tr_b16 {vr(d+2,2)}, v{addr} offset:{off1}")
        return f
    def mf(dst, b, first=False):
        def f(a):
            A(f"v_mfma_f32_16x16x32_bf16 {vr(dst)}, {vr(a)}, {vr(b)}, {'0' if first else vr(dst)}")
        return f
    def addr8(base, n, sh):
        A(f"v_add_u32 v{vA[0]}, s{sCUR}, v{base}")
        for i in range(1, n): A(f"v_xor_b32 v{vA[i]}, {i << sh}, v{vA[0]}")

    qwait = [30, 20, 20, 20, 20, 18, 16]
    A(f"s_mov_b32 s{sGOFF}, s{sWROW}")
    for n in range(7):
        A(f"s_mov_b32 s{sCUR}, {40960*(n%4)}")
        A(f"s_waitcnt vmcnt({qwait[n]})"); A("s_barrier")
        if n == 0: stamp()
        if 1 <= n <= 3: issue_q(n + 3)
        elif n == 4: A(f"s_mov_b32 s{sPREV}, {4*32768}"); issue_kv(sK, vDK)
        elif n == 5: A(f"s_mov_b32 s{sPREV}, 0"); issue_kv(sV, vDV); A(f"s_add_u32 s{sGOFF}, s{sGOFF}, 32768")
        elif n == 6: A(f"s_mov_b32 s{sPREV}, 32768"); issue_kv(sK, vDK)
        A(f"s_call_b64 s[{sRET}:{sRET+1}], L_qbody")
    A("s_barrier")
    stamp()
    A(f"s_mov_b32 s{sPREV}, {2*32768}"); issue_kv(sV, vDV); A(f"s_add_u32 s{sGOFF}, s{sGOFF}, 32768")
    for s in range(8):
        e, o = O + 8*s, O + 8*s + 4
        q = QF + 4*s
        A(f"v_cvt_pk_bf16_f32 v{q}, v{e}, v{e+1}"); A(f"v_cvt_pk_bf16_f32 v{q+1}, v{e+2}, v{e+3}")
        A(f"v_cvt_pk_bf16_f32 v{q+2}, v{o}, v{o+1}"); A(f"v_cvt_pk_bf16_f32 v{q+3}, v{o+2}, v{o+3}")
    for s in range(8):
        q = QF + 4*s
        A(f"v_permlane32_swap_b32 v{q}, v{q+2}"); A(f"v_permlane32_swap_b32 v{q+1}, v{q+3}")
    for s in range(8):
        q = QF + 4*s
        A(f"v_permlane16_swap_b32 v{q}, v{q+2}"); A(f"v_permlane16_swap_b32 v{q+1}, v{q+3}")
    if dump == "q":
        for s in range(8):
            A(f"s_add_u32 s{sT0}, s{sPOFF}, {s*1024}")
            A(f"buffer_store_dwordx4 {vr(QF+4*s)}, v{vLANE16}, {srd(sWS)}, s{sT0} offen")
        A("s_waitcnt vmcnt(0)"); A("s_endpgm")
    for i in range(64): A(f"v_mov_b32 v{O+i}, 0")
    A(f"v_mov_b32 v{vM}, {hex(f2u(-3.0e38))}"); A(f"v_mov_b32 v{vTHR}, {hex(f2u(-3.0e38))}")
    A(f"v_mov_b32 v{vMC}, 0"); A(f"v_mov_b32 v{vL}, 0"); A(f"v_mov_b32 v{vL2}, 0")
    A(f"s_mov_b32 s{sCUR}, {4*32768}"); A(f"s_mov_b32 s{sPREV}, {3*32768}"); A(f"s_mov_b32 s{sIT}, 0")
    A.label("L_loop")
    addr8(vKA0, 4, 6)
    A("s_waitcnt vmcnt(24)"); A("s_barrier")
    A(f"s_cmp_ge_u32 s{sIT}, 14"); A("s_cbranch_scc1 L_woA")
    issue_kv(sK, vDK)
    A.label("L_retA")
    items = []
    for kt in range(4):
        for s in range(8):
            def ld(d, kt=kt, s=s): A(f"ds_read_b128 {vr(d)}, v{vA[s & 3]} offset:{kt*8192 + (s >> 2)*256}")
            items.append((ld, mf(S + 4*kt, QF + 4*s, first=(s == 0))))
    pk = Pipe(items, 10, 1); pk.pre(); pk.run()
    advance()
    addr8(vVA0, 8, 5)
    A("s_waitcnt vmcnt(24)"); A("s_barrier")
    A(f"s_cmp_ge_u32 s{sIT}, 14"); A("s_cbranch_scc1 L_woB")
    issue_kv(sV, vDV); A(f"s_add_u32 s{sGOFF}, s{sGOFF}, 32768")
    A.label("L_retB")
    items = []
    for u in range(2):
        for tt in range(16):
            items.append((trload(vA[tt & 7], u*16384 + (tt >> 3)*256, u*16384 + 8192 + (tt >> 3)*256), mf(O + 4*tt, P + 4*u)))
    pv = Pipe(items, 7, 2); pv.pre()
    A(f"v_max3_f32 v{t[0]}, v{S}, v{S+1}, v{S+2}")
    for i in range(3, 15, 2): A(f"v_max3_f32 v{t[0]}, v{t[0]}, v{S+i}, v{S+i+1}")
    A(f"v_max_f32 v{t[0]}, v{t[0]}, v{S+15}")
    A(f"v_cmp_gt_f32 vcc, v{t[0]}, v{vTHR}")
    A("s_cbranch_vccnz L_resc")
    A.label("L_rescret")
    for i in range(16): A(f"v_fma_f32 v{S+i}, v{S+i}, s{sC}, -v{vMC}")
    for i in range(16): A(f"v_exp_f32 v{S+i}, v{S+i}")
    for i in range(0, 16, 2):
        A(f"v_add_f32 v{vL}, v{vL}, v{S+i}"); A(f"v_add_f32 v{vL2}, v{vL2}, v{S+i+1}")
        A(f"v_cvt_pk_bf16_f32 v{P + i//2}, v{S+i}, v{S+i+1}")
    pv.run()
    advance()
    A(f"s_add_u32 s{sIT}, s{sIT}, 1"); A(f"s_cmp_lt_u32 s{sIT}, 16"); A("s_cbranch_scc1 L_loop")
    stamp()
    A(f"v_add_f32 v{vL}, v{vL}, v{vL2}")
    A(f"v_mov_b32 v{t[0]}, v{vL}"); A(f"v_permlane32_swap_b32 v{t[0]}, v{vL}"); A(f"v_add_f32 v{vL}, v{vL}, v{t[0]}")
    A(f"v_mov_b32 v{t[0]}, v{vL}"); A(f"v_permlane16_swap_b32 v{t[0]}, v{vL}"); A(f"v_add_f32 v{vL}, v{vL}, v{t[0]}")
    A(f"v_rcp_f32 v{vL}, v{vL}")
    for i in range(64): A(f"v_mul_f32 v{O+i}, v{O+i}, v{vL}")
    for i in range(32): A(f"v_cvt_pk_bf16_f32 v{QF+i}, v{O+2*i}, v{O+2*i+1}")
    if dump == "o":
        for s in range(8):
            A(f"s_add_u32 s{sT0}, s{sPOFF}, {s*1024}")
            A(f"buffer_store_dwordx4 {vr(QF+4*s)}, v{vLANE16}, {srd(sWS)}, s{sT0} offen")
        A("s_waitcnt vmcnt(0)"); A("s_endpgm")
    ns = 2 if part_bf16 else 4
    wwait = [24, 24+ns, 24+2*ns, 24+3*ns, 16+4*ns, 8+4*ns, 4*ns]
    for j in range(7):
        A(f"s_waitcnt vmcnt({wwait[j]})"); A("s_barrier")
        if j < 3: issue_wo()
        A(f"s_call_b64 s[{sRET}:{sRET+1}], L_wbody")
    stamp()
    if stamps:
        A("s_waitcnt vmcnt(0)")
        stamp()
        A("s_waitcnt lgkmcnt(0)")
        A("s_load_dwordx2 s[4:5], s[0:1], 96"); A("s_waitcnt lgkmcnt(0)")
        A("s_add_u32 s4, s4, 0x4000000"); A("s_addc_u32 s5, s5, 0"); A("s_mov_b32 s6, 0x100000"); A("s_mov_b32 s7, 0x20000")
        A(f"s_lshl_b32 s{sT0}, s2, 8"); A(f"s_lshl_b32 s{sT1}, s{sW}, 6"); A(f"s_add_u32 s{sT0}, s{sT0}, s{sT1}")
        A(f"v_mov_b32 v{t[1]}, 0")
        for i in range(nst[0]):
            A(f"v_mov_b32 v{t[0]}, s{sTS+2*i}")
            A(f"buffer_store_dword v{t[0]}, v{t[1]}, s[4:7], s{sT0} offen offset:{4*i}")
    A.label("L_end"); A("s_endpgm")
    A.label("L_woA"); issue_wo(); A("s_branch L_retA")
    A.label("L_woB"); issue_wo(); A("s_branch L_retB")
    A.label("L_resc")
    A(f"v_mov_b32 v{t[1]}, v{t[0]}"); A(f"v_permlane32_swap_b32 v{t[1]}, v{t[0]}"); A(f"v_max_f32 v{t[0]}, v{t[0]}, v{t[1]}")
    A(f"v_mov_b32 v{t[1]}, v{t[0]}"); A(f"v_permlane16_swap_b32 v{t[1]}, v{t[0]}"); A(f"v_max3_f32 v{t[0]}, v{t[0]}, v{t[1]}, v{vM}")
    A(f"v_sub_f32 v{t[1]}, v{vM}, v{t[0]}"); A(f"v_mul_f32 v{t[1]}, s{sC}, v{t[1]}"); A(f"v_exp_f32 v{t[1]}, v{t[1]}")
    A(f"v_mov_b32 v{vM}, v{t[0]}"); A(f"v_mul_f32 v{vMC}, s{sC}, v{t[0]}")
    A(f"v_add_f32 v{vTHR}, {hex(f2u(8.0*16/math.log2(math.e)))}, v{t[0]}")
    A(f"v_mul_f32 v{vL}, v{vL}, v{t[1]}"); A(f"v_mul_f32 v{vL2}, v{vL2}, v{t[1]}")
    for i in range(64): A(f"v_mul_f32 v{O+i}, v{O+i}, v{t[1]}")
    A("s_branch L_rescret")
    A.label("L_qbody")
    addr8(vVA0, 8, 5)
    A(f"v_add_u32 v{t[0]}, s{sCUR}, v{vXA0}")
    for i in range(1, 4): A(f"v_xor_b32 v{t[i]}, {32*i}, v{t[0]}")
    for sp in range(2):
        for sec in range(2): A(f"ds_read_b64 {vr(vXF + 4*sp + 2*sec, 2)}, v{t[2*sp+sec]}")
    items = []
    for sp in range(2):
        for tt in range(16):
            items.append((trload(vA[tt & 7], sp*16384 + (tt >> 3)*256, sp*16384 + 8192 + (tt >> 3)*256), mf(O + 4*tt, vXF + 4*sp)))
    pq = Pipe(items, 7, 2); pq.pre(); pq.run()
    A(f"s_setpc_b64 s[{sRET}:{sRET+1}]")
    A.label("L_wbody")
    addr8(vOA0, 4, 5)
    items = []
    for tt in range(4):
        for u in range(8):
            items.append((trload(vA[tt], u*4096, u*4096 + 2048), mf(S + 4*tt, QF + 4*u, first=(u == 0))))
    pw = Pipe(items, 7, 2); pw.pre(); pw.run()
    advance()
    if part_bf16:
        for i in range(8): A(f"v_cvt_pk_bf16_f32 v{P+i}, v{S+2*i}, v{S+2*i+1}")
        for hh in range(2): A(f"buffer_store_dwordx4 {vr(P+4*hh)}, v{vLANE16}, {srd(sWS)}, s{sPOFF} offen offset:{1024*hh}")
        A(f"s_add_u32 s{sPOFF}, s{sPOFF}, 2048")
    else:
        for tt in range(4): A(f"buffer_store_dwordx4 {vr(S+4*tt)}, v{vLANE16}, {srd(sWS)}, s{sPOFF} offen offset:{1024*tt}")
        A(f"s_add_u32 s{sPOFF}, s{sPOFF}, 4096")
    A("s_nop 1")
    A(f"s_setpc_b64 s[{sRET}:{sRET+1}]")

    A(".globl red_kernel"); A(".p2align 8"); A(".type red_kernel,@function"); A.label("red_kernel")
    assert not part_bf16
    A(f"s_cmp_ge_u32 s2, 28"); A("s_cbranch_scc1 L_rend")
    A("s_load_dwordx2 s[4:5], s[0:1], 80"); A("s_load_dwordx2 s[8:9], s[0:1], 96")
    A("v_lshrrev_b32 v1, 6, v0"); A("v_and_b32 v2, 63, v0")
    A("v_lshlrev_b32 v3, 4, v0")
    A("s_mul_i32 s12, s2, 37"); A("s_lshr_b32 s12, s12, 8")
    A("s_mul_i32 s13, s12, 7"); A("s_sub_u32 s13, s2, s13")
    A(f"s_mul_i32 s14, s3, {16*PB}"); A("s_lshl_b32 s15, s2, 12"); A("s_add_u32 s14, s14, s15")
    A("s_waitcnt lgkmcnt(0)")
    A("s_add_u32 s8, s8, s14"); A("s_addc_u32 s9, s9, 0"); A(f"s_mov_b32 s10, {16*PB}"); A("s_mov_b32 s11, 0x20000")
    A(f"s_mov_b32 s6, {8*64*896*2}"); A("s_mov_b32 s7, 0x20000")
    A("s_mov_b32 s16, 0")
    for h in range(16):
        A(f"buffer_load_dwordx4 {vr(8+4*h)}, v3, s[8:11], s16 offen")
        if h < 15: A(f"s_add_u32 s16, s16, {PB}")
    A("s_and_b32 s17, s3, 7"); A("s_lshr_b32 s18, s3, 3")
    A("s_lshl_b32 s17, s17, 6"); A("s_lshl_b32 s19, s12, 4"); A("s_add_u32 s17, s17, s19"); A("s_mul_i32 s17, s17, 1792")
    A("s_mul_i32 s18, s18, 896"); A("s_add_u32 s17, s17, s18"); A("s_lshl_b32 s19, s13, 7"); A("s_add_u32 s17, s17, s19")
    A("v_and_b32 v4, 15, v2"); A("v_mul_u32_u24 v4, 1792, v4"); A("v_lshrrev_b32 v5, 4, v2")
    A("v_lshl_add_u32 v4, v5, 3, v4"); A("v_lshl_add_u32 v4, v1, 5, v4")
    for h in range(1, 16):
        A(f"s_waitcnt vmcnt({15-h})")
        for i in range(4): A(f"v_add_f32 v{8+i}, v{8+i}, v{8+4*h+i}")
    A("v_cvt_pk_bf16_f32 v6, v8, v9"); A("v_cvt_pk_bf16_f32 v7, v10, v11")
    A("buffer_store_dwordx2 v[6:7], v4, s[4:7], s17 offen")
    A.label("L_rend"); A("s_endpgm")
    A('.section .rodata,"a"')
    for k, nv, y in (("attn_kernel", 248, 0), ("red_kernel", 72, 1)):
        A(".p2align 6"); A(f".amdhsa_kernel {k}")
        for d in [f"next_free_vgpr {nv}", "next_free_sgpr 96", f"accum_offset {nv}", "group_segment_fixed_size 0", "kernarg_size 104",
                  "user_sgpr_count 2", "user_sgpr_kernarg_segment_ptr 1", "system_sgpr_workgroup_id_x 1"] + (["system_sgpr_workgroup_id_y 1"] if y else []):
            A(f".amdhsa_{d}")
        A(".end_amdhsa_kernel")
    return A.finalize()

if __name__ == "__main__":
    open("k1.s", "w").write(gen())
    open("k1_q.s", "w").write(gen(dump="q"))
    open("k1_o.s", "w").write(gen(dump="o"))
    open("k1_st.s", "w").write(gen(stamps=True))
```
